```python
import torch

def _softmax(x, axis=-1):
    return torch.softmax(x, dim=axis)
def _gelu(x):
    return torch.nn.functional.gelu(x, approximate="tanh")
def _silu(x):
    return torch.nn.functional.silu(x)
def _sigmoid(x):
    return torch.sigmoid(x)
def _layernorm(x, axis=-1, eps=1e-5):
    m = x.mean(dim=axis, keepdim=True)
    v = x.var(dim=axis, keepdim=True, unbiased=False)
    return (x - m) / torch.sqrt(v + eps)
def _scatter_add(tgt, idx, src, axis=0):
    return tgt.clone().index_add_(axis, idx, src)
def _segment_sum(src, seg, n):
    out = torch.zeros((n,) + src.shape[1:], dtype=src.dtype)
    return out.index_add_(0, seg, src)
def _pad(x, pw):
    flat = tuple(v for pair in reversed(pw) for v in pair)
    return torch.nn.functional.pad(x, flat)

kernel_name = 'sequential_preLN__spectral_fnet__glu_gated_glu__prompt'

def setup_inputs():

    _w = (lambda a: (lambda t: t.to(torch.bfloat16) if t.is_floating_point() else t)(torch.as_tensor(a)))
    def _A_setup():
        B, S, D = 1, 2048, 576
        ns = torch.arange(S)[:, None] * torch.arange(S)[None, :]
        nd = torch.arange(D)[:, None] * torch.arange(D)[None, :]
        Ws_re = torch.cos(-2.0 * torch.pi * ns / S).to(float)
        Ws_im = torch.sin(-2.0 * torch.pi * ns / S).to(float)
        Wd_re = torch.cos(-2.0 * torch.pi * nd / D).to(float)
        Wd_im = torch.sin(-2.0 * torch.pi * nd / D).to(float)
        return {
            "x": _w((lambda *s: torch.randn(*s, dtype=torch.bfloat16) * 0.05)(B, S, D)),
            "dft_seq_re": _w(Ws_re),
            "dft_seq_im": _w(Ws_im),
            "dft_hid_re": _w(Wd_re),
            "dft_hid_im": _w(Wd_im),
        }
    _A_in = _A_setup()

    def _B_setup():
        B, S, D, F = 1, 2048, 576, 4608
        return {
            "x": _w((lambda *s: torch.randn(*s, dtype=torch.bfloat16) * 0.05)(B, S, D)),
            "w_gate": _w((lambda *s: torch.randn(*s, dtype=torch.bfloat16) * 1.6)(D, F)),
            "w_up": _w((lambda *s: torch.randn(*s, dtype=torch.bfloat16) * 0.4)(D, F)),
            "w_down": _w((lambda *s: torch.randn(*s, dtype=torch.bfloat16) * 0.4)(F, D)),
        }
    _B_in = _B_setup()

    return {
        "A_x": _A_in["x"],
        "A_dft_seq_re": _A_in["dft_seq_re"],
        "A_dft_seq_im": _A_in["dft_seq_im"],
        "A_dft_hid_re": _A_in["dft_hid_re"],
        "A_dft_hid_im": _A_in["dft_hid_im"],
        "B_x": _B_in["x"],
        "B_w_gate": _B_in["w_gate"],
        "B_w_up": _B_in["w_up"],
        "B_w_down": _B_in["w_down"],
    }

def reference(A_x, A_dft_seq_re, A_dft_seq_im, A_dft_hid_re, A_dft_hid_im, B_x, B_w_gate, B_w_up, B_w_down):
    def _A_ref(x, dft_seq_re, dft_seq_im, dft_hid_re, dft_hid_im):
        a = torch.einsum("bsd,ed->bse", x, dft_hid_re)
        b = torch.einsum("bsd,ed->bse", x, dft_hid_im)
        y = torch.einsum("ts,bse->bte", dft_seq_re, a) - torch.einsum("ts,bse->bte", dft_seq_im, b)
        return y

    def _B_ref(x, w_gate, w_up, w_down):
        g = torch.einsum("bsd,df->bsf", x, w_gate)
        u = torch.einsum("bsd,df->bsf", x, w_up)
        h = _sigmoid(g) * u
        return torch.einsum("bsf,fd->bsd", h, w_down)

    x = A_x
    h = x + _A_ref(_layernorm(x, axis=-1), A_dft_seq_re, A_dft_seq_im, A_dft_hid_re, A_dft_hid_im)
    h2 = h + _B_ref(_layernorm(h, axis=-1), B_w_gate, B_w_up, B_w_down)
    return h2
```

```python
NAME = "sequential_preLN__spectral_fnet__glu_gated_glu__prompt"

KA_X, KA_CR, KA_CI, KA_WR, KA_WI, KA_BX, KA_WG, KA_WU, KA_WD, KA_OUT, KA_DBG, KA_WS = [8 * i for i in range(12)]

WS_ABT, SZ_ABT = 0x0000000, 36 * 128 * 1024
WS_P2, SZ_P = 0x0500000, 4 * 128 * 4 * 4608
WS_H, SZ_H = 0x0E00000, 128 * 18 * 1024
WS_HN = 0x1080000
WS_HH, SZ_HH = 0x1300000, 128 * 144 * 1024
WS_P4 = 0x2500000


def vr(a, n=1):
    return f"v{a}" if n == 1 else f"v[{a}:{a+n-1}]"


def sr(a, n=1):
    return f"s{a}" if n == 1 else f"s[{a}:{a+n-1}]"


class K:
    def __init__(self, name, grid, block, lds, vgpr, sgpr=96):
        self.name, self.grid, self.block, self.lds, self.vgpr, self.sgpr = name, grid, block, lds, vgpr, sgpr
        self.o = []
        self.nlab = 0

    def e(self, s):
        for ln in s.strip("\n").split("\n"):
            ln = ln.strip()
            if not ln:
                continue
            self.o.append(ln if ln.endswith(":") else "    " + ln)

    def lab(self, base):
        self.nlab += 1
        return f"L_{self.name}_{base}_{self.nlab}"

    def srd(self, d, b, nbytes, add=0):
        if add:
            self.e(f"s_add_u32 s{d}, s{b}, {add:#x}\ns_addc_u32 s{d+1}, s{b+1}, 0")
        else:
            self.e(f"s_mov_b32 s{d}, s{b}\ns_mov_b32 s{d+1}, s{b+1}")
        self.e(f"s_mov_b32 s{d+2}, {nbytes:#x}\ns_mov_b32 s{d+3}, 0x20000")

    def mfma(self, d, a, b, c=None):
        cs = vr(d, 4) if c is None else c
        self.e(f"v_mfma_f32_16x16x32_bf16 {vr(d,4)}, {vr(a,4)}, {vr(b,4)}, {cs}")

    def text(self):
        lab = self.name + "_kernel"
        acc = (self.vgpr + 3) // 4 * 4
        t = [f".text\n.globl {lab}\n.p2align 8\n.type {lab},@function\n{lab}:"]
        t += self.o
        t.append(f""".section .rodata,"a"
.p2align 6
.amdhsa_kernel {lab}
  .amdhsa_next_free_vgpr {self.vgpr}
  .amdhsa_next_free_sgpr {self.sgpr}
  .amdhsa_accum_offset {acc}
  .amdhsa_group_segment_fixed_size 0
  .amdhsa_kernarg_size 96
  .amdhsa_user_sgpr_count 2
  .amdhsa_user_sgpr_kernarg_segment_ptr 1
  .amdhsa_system_sgpr_workgroup_id_x 1
  .amdhsa_float_denorm_mode_32 3
  .amdhsa_float_denorm_mode_16_64 3
.end_amdhsa_kernel""")
        return "\n".join(t)

    def launch_line(self):
        return f"; @launch kernel={self.name}_kernel grid=({self.grid},1,1) block=({self.block},1,1) lds={self.lds}"


HEADER = """; Kernarg layout (96 bytes, ptrs only, base s[0:1]):
; Generated by gen/gen.py (hand-written generator)."""


def assemble_file(kernels):
    t = [HEADER]
    t += [k.launch_line() for k in kernels]
    t.append('.amdgcn_target "amdgcn-amd-amdhsa--gfx950"')
    seen = set()
    for k in kernels:
        if k.name in seen:
            continue
        seen.add(k.name)
        t.append(k.text())
    return "\n".join(t) + "\n"
```

```python
from asmlib import *


def bf16_round(k, dst, src):
    k.e(f"v_cvt_pk_bf16_f32 v{dst}, v{src}, v{src}")
    k.e(f"v_lshlrev_b32 v{dst}, 16, v{dst}")


def gen_k1():
    k = K("k1", 256, 512, 147456, 176)
    XN, WRING, WSLOT = 0, 73728, 18432
    e = k.e
    e(f"""
    s_cmp_ge_u32 s2, 256
    s_cbranch_scc1 L_k1_end
    s_load_dwordx2 s[4:5], s[0:1], {KA_X}
    s_load_dwordx4 s[12:15], s[0:1], {KA_WR}
    s_load_dwordx2 s[8:9], s[0:1], {KA_WS}
    v_lshrrev_b32 v1, 6, v0
    v_and_b32 v2, 63, v0                 ; lane
    v_readfirstlane_b32 s28, v1
    s_and_b32 s3, s2, 7                  ; xcd
    s_lshr_b32 s33, s2, 3                ; idx
    s_lshr_b32 s30, s3, 2                ; mat
    s_and_b32 s29, s3, 3
    s_lshl_b32 s29, s29, 3
    s_lshr_b32 s34, s33, 2
    s_add_u32 s29, s29, s34              ; sigma
    s_and_b32 s31, s33, 3                ; R
    v_lshrrev_b32 v3, 3, v2              ; r8
    v_and_b32 v4, 7, v2                  ; c8
    v_mul_u32_u24 v5, 1152, v3
    v_lshl_add_u32 v6, v4, 4, v5         ; vX = r8*1152 + c8*16
    v_xor_b32 v7, v4, v3
    v_lshl_add_u32 v7, v7, 4, v5         ; vW = r8*1152 + ((c8^r8)<<4)
    s_lshl_b32 s34, s29, 3
    s_add_u32 s34, s34, s28
    s_mul_i32 s34, s34, 9216             ; (64 sigma + 8w)*1152
    s_waitcnt lgkmcnt(0)
    """)
    k.srd(16, 4, 2359296)
    X0 = 8
    for q in range(9):
        e(f"buffer_load_dwordx4 {vr(X0+4*q,4)}, v6, s[16:19], s34 offen offset:{q*128}")
    e(f"""
    s_cmp_eq_u32 s30, 0
    s_cselect_b32 s20, s12, s14
    s_cselect_b32 s21, s13, s15
    s_mov_b32 s22, 663552
    s_mov_b32 s23, 0x20000
    """)
    k.srd(24, 8, SZ_ABT, WS_ABT)
    e(f"""
    s_and_b32 s35, s29, 7
    s_lshr_b32 s36, s28, 1               ; slot
    s_add_u32 s37, s35, s36
    s_cmp_ge_u32 s37, 9
    s_cselect_b32 s38, 9, 0
    s_sub_u32 s37, s37, s38              ; panel
    s_lshl_b32 s37, s37, 7               ; *128
    s_mul_i32 s39, s31, 165888           ; R*144*1152
    s_add_u32 s37, s37, s39
    s_and_b32 s38, s28, 1
    s_mul_i32 s40, s38, 82944            ; 9*9216
    s_add_u32 s37, s37, s40              ; soffset
    s_mul_i32 s40, s36, {WSLOT}
    s_mul_i32 s41, s38, 9216
    s_add_u32 s40, s40, s41
    s_add_u32 s40, s40, {WRING}          ; m0 base
    """)
    for n in range(9):
        e(f"s_add_u32 m0, s40, {n*1024}")
        e(f"s_add_u32 s41, s37, {n*9216}")
        e(f"buffer_load_dwordx4 v7, s[20:23], s41 offen lds")
    F0 = 44
    e("s_waitcnt vmcnt(9)")
    for j in range(36):
        e(f"v_lshlrev_b32 v{F0+2*j}, 16, v{X0+j}")
        e(f"v_and_b32 v{F0+2*j+1}, 0xffff0000, v{X0+j}")
    S = 116
    for a in range(4):
        e(f"v_pk_add_f32 {vr(S+2*a,2)}, {vr(F0+2*a,2)}, {vr(F0+2*(a+4),2)}")
    for j in range(8, 36):
        a = j % 4
        e(f"v_pk_add_f32 {vr(S+2*a,2)}, {vr(S+2*a,2)}, {vr(F0+2*j,2)}")

    def fold_reduce8():
        e(f"""
        v_pk_add_f32 {vr(S,2)}, {vr(S,2)}, {vr(S+2,2)}
        v_pk_add_f32 {vr(S+4,2)}, {vr(S+4,2)}, {vr(S+6,2)}
        v_pk_add_f32 {vr(S,2)}, {vr(S,2)}, {vr(S+4,2)}
        v_add_f32 v{S}, v{S}, v{S+1}
        s_nop 1
        v_add_f32_dpp v{S}, v{S}, v{S} quad_perm:[1,0,3,2] row_mask:0xf bank_mask:0xf
        s_nop 1
        v_add_f32_dpp v{S}, v{S}, v{S} quad_perm:[2,3,0,1] row_mask:0xf bank_mask:0xf
        s_nop 1
        v_add_f32_dpp v{S}, v{S}, v{S} row_half_mirror row_mask:0xf bank_mask:0xf
        """)
    fold_reduce8()
    M, DL = 124, 126
    e(f"v_mul_f32 v{DL}, 0x3ae38e39, v{S}")
    bf16_round(k, M, DL)
    e(f"""
    v_sub_f32 v{DL}, v{DL}, v{M}
    v_sub_f32 v{M}, 0, v{M}
    v_mov_b32 v{M+1}, v{M}
    """)
    for j in range(36):
        e(f"v_pk_add_f32 {vr(F0+2*j,2)}, {vr(F0+2*j,2)}, {vr(M,2)}")
    for a in range(4):
        e(f"v_pk_mul_f32 {vr(S+2*a,2)}, {vr(F0+2*a,2)}, {vr(F0+2*a,2)}")
    for j in range(4, 36):
        a = j % 4
        e(f"v_pk_fma_f32 {vr(S+2*a,2)}, {vr(F0+2*j,2)}, {vr(F0+2*j,2)}, {vr(S+2*a,2)}")
    fold_reduce8()
    e(f"""
    v_mul_f32 v{S}, 0x3ae38e39, v{S}
    v_fma_f32 v{S}, -v{DL}, v{DL}, v{S}
    v_max_f32 v{S}, 0, v{S}
    """)
    bf16_round(k, S, S)
    e(f"v_add_f32 v{S}, 0x3727c5ac, v{S}")
    bf16_round(k, S, S)
    e(f"v_sqrt_f32 v{S}, v{S}\ns_nop 0")
    bf16_round(k, S, S)
    e(f"""
    v_rcp_f32 v{M}, v{S}
    s_lshl_b32 s42, s30, 31
    s_nop 0
    v_xor_b32 v{M}, s42, v{M}
    v_mov_b32 v{M+1}, v{M}
    """)
    e(f"""
    s_and_b32 s43, s28, 1
    s_lshl_b32 s43, s43, 2
    v_and_b32 v5, 3, v3
    v_or_b32 v5, s43, v5
    v_xor_b32 v5, v5, v4
    v_lshlrev_b32 v5, 4, v5
    v_lshl_add_u32 v5, v3, 7, v5
    s_lshl_b32 s43, s28, 10
    v_add_u32 v5, s43, v5
    v_add_u32 v6, 0x10000, v5
    """)
    for q in range(9):
        for j in range(4 * q, 4 * q + 4):
            e(f"v_pk_mul_f32 {vr(F0+2*j,2)}, {vr(F0+2*j,2)}, {vr(M,2)}")
        for j in range(4 * q, 4 * q + 4):
            e(f"v_cvt_pk_bf16_f32 v{X0+j}, v{F0+2*j}, v{F0+2*j+1}")
        if q < 8:
            e(f"ds_write_b128 v5, {vr(X0+4*q,4)} offset:{q*8192}")
        else:
            e(f"ds_write_b128 v6, {vr(X0+4*q,4)}")
    e(f"""
    s_cmp_ge_u32 s28, 4
    s_cbranch_scc1 L_k1_loader
    """)
    AA, AB = 0, 4
    e(f"""
    v_and_b32 v8, 15, v2                 ; i
    v_lshrrev_b32 v9, 4, v2              ; g
    v_and_b32 v10, 7, v8
    v_xor_b32 v10, v10, v9
    v_lshlrev_b32 v10, 4, v10
    s_lshr_b32 s44, s28, 1               ; kl
    s_and_b32 s45, s28, 1                ; p
    v_lshrrev_b32 v11, 2, v8
    v_lshlrev_b32 v11, 3, v11
    v_and_b32 v12, 3, v8
    v_add_u32 v11, v11, v12              ; row = 8*(i>>2)+(i&3)
    v_lshl_add_u32 v11, v11, 7, v10
    s_lshl_b32 s46, s44, 12              ; kl*32*128
    s_lshl_b32 s47, s35, 13
    s_add_u32 s46, s46, s47
    v_lshlrev_b32 v13, 4, v2
    v_add_u32 v0, s46, v11
    v_xor_b32 v1, 64, v0
    s_lshl_b32 s47, s45, 9
    v_add_u32 v2, s47, v0
    v_add_u32 v3, s47, v1
    v_lshl_add_u32 v12, v8, 7, v10       ; i*128+swz
    s_lshl_b32 s47, s45, 13              ; 4p*2048
    s_add_u32 s47, s47, {WRING}
    v_add_u32 v4, s47, v12
    v_xor_b32 v5, 64, v4
    v_add_u32 v6, {WRING + 16384}, v12
    v_xor_b32 v7, 64, v6
    v_mov_b32 v8, v13
    """)
    ACC = 12
    for j in range(36):
        e(f"v_mov_b32 v{ACC+j}, 0")
    SET = [48, 112]

    def reads(s):
        r = []
        for ks in range(2):
            b = SET[s] + 32 * ks
            r.append(f"ds_read_b128 {vr(b,4)}, v{AA+ks}")
            r.append(f"ds_read_b128 {vr(b+12,4)}, v{AB+ks}")
            r.append(f"ds_read_b128 {vr(b+4,4)}, v{AA+ks} offset:512")
            for a in range(1, 4):
                r.append(f"ds_read_b128 {vr(b+12+4*a,4)}, v{AB+ks} offset:{a*2048}")
            r.append(f"ds_read_b128 {vr(b+8,4)}, v{AA+2+ks}")
            r.append(f"ds_read_b128 {vr(b+28,4)}, v{AB+2+ks}")
        return r

    def advance():
        return [
            "s_add_u32 s48, s48, 1",
            "s_cmp_eq_u32 s48, 9",
            "s_cselect_b32 s48, 0, s48",
            "s_cselect_b32 s50, s54, s55",
            "s_add_u32 s49, s49, 1",
            "s_and_b32 s49, s49, 3",
            "s_cselect_b32 s51, s56, s57",
        ] + [f"v_add_u32 v{AA+j}, s50, v{AA+j}" for j in range(4)] + [f"v_add_u32 v{AB+j}, s51, v{AB+j}" for j in range(4)]

    def group(s):
        rd = reads(1 - s)
        n = 0
        for ks in range(2):
            b = SET[s] + 32 * ks
            for a in range(4):
                for h in range(2):
                    k.mfma(ACC + 4 * (2 * a + h), b + 4 * h, b + 12 + 4 * a)
                    for _ in range(2):
                        if n < len(rd):
                            e(rd[n]); n += 1
            k.mfma(ACC + 32, b + 8, b + 28)
            if ks == 0:
                for ln in advance():
                    e(ln)

    e(f"""
    s_mov_b32 s48, s35
    s_mov_b32 s49, 0
    s_mov_b32 s52, 0
    s_mov_b32 s54, {(-65536) & 0xffffffff:#x}
    s_mov_b32 s55, 8192
    s_mov_b32 s56, {WSLOT}
    s_mov_b32 s57, {(-3*WSLOT) & 0xffffffff:#x}
    s_waitcnt vmcnt(0) lgkmcnt(0)
    s_barrier
    """)
    for ln in reads(0):
        e(ln)
    for ln in advance():
        e(ln)
    e("L_k1_loop:")
    e("s_waitcnt lgkmcnt(0)\ns_barrier")
    group(0)
    e("s_cmp_eq_u32 s52, 4\ns_cbranch_scc1 L_k1_epi")
    e("s_waitcnt lgkmcnt(0)\ns_barrier")
    group(1)
    e("s_add_u32 s52, s52, 1\ns_branch L_k1_loop")
    e("L_k1_epi:")
    e(f"""
    s_lshl_b32 s46, s31, 7
    s_lshl_b32 s47, s30, 6
    s_add_u32 s46, s46, s47
    s_lshl_b32 s47, s29, 1
    s_add_u32 s46, s46, s47
    s_add_u32 s46, s46, s44
    s_mul_i32 s46, s46, 9216
    s_lshl_b32 s47, s45, 12
    s_add_u32 s47, s47, s46              ; + 4p*1024
    s_lshl_b32 s53, s45, 3
    s_add_u32 s53, s53, s46
    s_add_u32 s53, s53, 8192
    s_waitcnt lgkmcnt(0)
    """)
    O = 48
    for a in range(4):
        for h in range(2):
            c = ACC + 4 * (2 * a + h)
            e(f"v_cvt_pk_bf16_f32 v{O+4*a+2*h}, v{c}, v{c+1}")
            e(f"v_cvt_pk_bf16_f32 v{O+4*a+2*h+1}, v{c+2}, v{c+3}")
        e(f"buffer_store_dwordx4 {vr(O+4*a,4)}, v8, s[24:27], s47 offen offset:{a*1024}")
    c = ACC + 32
    e(f"v_cvt_pk_bf16_f32 v{O+16}, v{c}, v{c+1}")
    e(f"v_cvt_pk_bf16_f32 v{O+17}, v{c+2}, v{c+3}")
    e(f"buffer_store_dwordx2 {vr(O+16,2)}, v8, s[24:27], s53 offen")
    e("s_endpgm")
    e("L_k1_loader:")
    e(f"""
    s_sub_u32 s44, s28, 4                ; lw
    s_lshl_b32 s45, s44, 2
    s_lshr_b32 s46, s44, 1
    s_add_u32 s45, s45, s46              ; rbstart
    s_mul_i32 s46, s45, 9216
    s_add_u32 s46, s46, s39
    s_lshl_b32 s45, s45, 10
    s_add_u32 s45, s45, {WRING}          ; m0 part
    s_add_u32 s48, s35, 4
    s_cmp_ge_u32 s48, 9
    s_cselect_b32 s38, 9, 0
    s_sub_u32 s48, s48, s38
    s_waitcnt vmcnt(0) lgkmcnt(0)
    s_barrier
    """)
    for g in range(9):
        need = g + 1
        if 4 <= need <= 8:
            allowed = 5 * len([x for x in (g + 2, g + 3) if x <= 8])
            e(f"s_waitcnt vmcnt({allowed})")
        e("s_barrier")
        if g + 4 <= 8:
            e(f"s_lshl_b32 s47, s48, 7\ns_add_u32 s47, s47, s46")
            for n in range(5):
                e(f"s_add_u32 m0, s45, {(g % 4) * WSLOT + n * 1024}")
                e(f"s_add_u32 s41, s47, {n*9216}")
                e(f"buffer_load_dwordx4 v7, s[20:23], s41 offen lds")
            e("s_add_u32 s48, s48, 1\ns_cmp_eq_u32 s48, 9\ns_cselect_b32 s48, 0, s48")
    e("L_k1_end:\ns_endpgm")
    return k
```

```python
from asmlib import *

SLOT = 34816


def gen_gemm(which, rot_period=4):
    k2 = which == "k2"
    NG = 16 if k2 else 18
    k = K(which, 256, 512, 4 * SLOT, 168)
    e = k.e
    L = f"L_{which}"
    e(f"""
    s_cmp_ge_u32 s2, 256
    s_cbranch_scc1 {L}_end
    """)
    if k2:
        e(f"s_load_dwordx4 s[12:15], s[0:1], {KA_CR}")
    else:
        e(f"s_load_dwordx2 s[12:13], s[0:1], {KA_WD}")
    e(f"""
    s_load_dwordx2 s[8:9], s[0:1], {KA_WS}
    v_lshrrev_b32 v1, 6, v0
    v_and_b32 v2, 63, v0                 ; lane
    v_readfirstlane_b32 s28, v1
    s_and_b32 s3, s2, 7                  ; xcd
    s_lshr_b32 s33, s2, 3                ; idx
    s_lshr_b32 s30, s3, 1
    s_and_b32 s29, s3, 1
    s_lshl_b32 s29, s29, 3
    s_lshr_b32 s34, s33, 2
    s_add_u32 s29, s29, s34
    s_and_b32 s31, s33, 3                ; R
    v_lshlrev_b32 v3, 4, v2              ; lane*16
    s_cmp_ge_u32 s28, 4
    s_cbranch_scc1 {L}_loader
    """)
    ACC = 0
    SET = [72, 108]
    AD = 144
    e(f"""
    s_lshr_b32 s44, s28, 1               ; h
    s_and_b32 s45, s28, 1                ; p
    v_and_b32 v8, 15, v2                 ; i
    v_lshrrev_b32 v9, 4, v2              ; g
    v_mov_b32 v{AD+8}, v3                ; lane*16
    v_lshlrev_b32 v{AD+9}, 3, v2         ; lane*8
    """)
    if k2:
        NADDR = 6
        vA, vA8, vB = AD, AD + 1, AD + 2
        e(f"""
        s_lshl_b32 s46, s45, 12
        s_add_u32 s46, s46, 16384
        v_add_u32 v{vA}, s46, v3
        v_add_u32 v{vA8}, {16384+8192}, v3
        v_and_b32 v10, 7, v8
        v_xor_b32 v10, v10, v9
        v_lshlrev_b32 v10, 4, v10
        v_lshl_add_u32 v10, v8, 7, v10       ; i*128 + swz
        s_lshl_b32 s46, s44, 13              ; 4h*2048
        s_lshl_b32 s47, s45, 12              ; 2p*2048
        s_add_u32 s48, s46, s47
        s_xor_b32 s47, s47, 4096
        s_add_u32 s49, s46, s47
        v_add_u32 v{vB}, s48, v10
        v_add_u32 v{vB+1}, s49, v10
        v_xor_b32 v{vB+2}, 64, v{vB}
        v_xor_b32 v{vB+3}, 64, v{vB+1}
        """)

        def reads(s, ks):
            b = SET[s]
            r = []
            r.append(f"ds_read_b128 {vr(b,4)}, v{vA} offset:{ks*9216}")
            for j in range(4):
                r.append(f"ds_read_b128 {vr(b+20+4*j,4)}, v{vB+2*ks+(j>>1)} offset:{(j&1)*2048}")
            for a in range(1, 4):
                r.append(f"ds_read_b128 {vr(b+4*a,4)}, v{vA} offset:{ks*9216+a*1024}")
            r.append(f"ds_read_b128 {vr(b+16,4)}, v{vA8} offset:{ks*9216}")
            return r
    else:
        NADDR = 4
        vA, vA8, vB = AD, AD + 1, AD + 2
        e(f"""
        v_lshrrev_b32 v10, 2, v2
        v_mul_u32_u24 v10, 288, v10
        v_and_b32 v11, 3, v2
        v_lshl_add_u32 v10, v11, 3, v10
        s_lshl_b32 s46, s45, 7               ; 4p*32
        v_add_u32 v{vA}, s46, v10
        v_add_u32 v{vA8}, 256, v10
        s_lshl_b32 s46, s44, 12              ; 4h*1024
        s_add_u32 s46, s46, 18432
        s_lshl_b32 s47, s45, 11              ; 2p*1024
        s_add_u32 s48, s46, s47
        s_xor_b32 s47, s47, 2048
        s_add_u32 s49, s46, s47
        v_add_u32 v{vB}, s48, v3
        v_add_u32 v{vB+1}, s49, v3
        """)

        def reads(s, ks):
            b = SET[s]
            r = []

            def tr(dst, va, off):
                r.append(f"ds_read_b64_tr_b16 {vr(dst,2)}, v{va} offset:{ks*9216+off}")
                r.append(f"ds_read_b64_tr_b16 {vr(dst+2,2)}, v{va} offset:{ks*9216+4608+off}")
            tr(b, vA, 0)
            for j in range(4):
                r.append(f"ds_read_b128 {vr(b+20+4*j,4)}, v{vB+(j>>1)} offset:{ks*8192+(j&1)*1024}")
            for a in range(1, 4):
                tr(b + 4 * a, vA, a * 32)
            tr(b + 16, vA8, 0)
            return r

    e(f"""
    s_waitcnt lgkmcnt(0)
    """)
    k.srd(24, 8, SZ_P, WS_P2 if k2 else WS_P4)
    for j in range(72):
        e(f"v_mov_b32 v{ACC+j}, 0")
    e(f"""
    s_mov_b32 s49, 0
    s_mov_b32 s52, {NG}
    s_mov_b32 s56, {SLOT}
    s_mov_b32 s57, {(-3*SLOT) & 0xffffffff:#x}
    s_barrier
    """)
    for ln in reads(0, 0):
        e(ln)

    def kstep(s, rd, extra=()):
        b = SET[s]
        rd = list(rd)
        extra = list(extra)
        per = 1 if k2 else 2
        tiles = [(ACC + 4 * (4 * a + j), b + 4 * a, b + 20 + 4 * j) for a in range(4) for j in range(4)]
        tiles += [(ACC + 64 + 4 * j, b + 16, b + 20 + 4 * j) for j in range(2)]
        for (d, a_, b_) in tiles:
            k.mfma(d, a_, b_)
            if rd:
                for _ in range(per):
                    if rd:
                        e(rd.pop(0))
            elif extra:
                e(extra.pop(0))
        assert not rd
        for ln in extra:
            e(ln)

    adv = ["s_add_u32 s49, s49, 1", "s_and_b32 s49, s49, 3", "s_cselect_b32 s51, s56, s57"]
    adv += [f"v_add_u32 v{AD+j}, s51, v{AD+j}" for j in range(NADDR)]
    e(f"{L}_loop:")
    e("s_waitcnt lgkmcnt(0)")
    kstep(0, reads(1, 1), adv)
    e("s_waitcnt lgkmcnt(0)\ns_barrier")
    kstep(1, reads(0, 0), ["s_sub_u32 s52, s52, 1", "s_cmp_lg_u32 s52, 0"])
    e(f"s_cbranch_scc1 {L}_loop")
    e(f"""
    s_lshl_b32 s46, s30, 7
    s_lshl_b32 s47, s29, 3
    s_add_u32 s46, s46, s47
    s_lshl_b32 s47, s44, 2
    s_add_u32 s46, s46, s47
    s_lshl_b32 s47, s45, 1
    s_add_u32 s48, s46, s47              ; T for j=0
    s_xor_b32 s47, s47, 2
    s_add_u32 s49, s46, s47              ; T for j=2
    s_mul_i32 s50, s31, 4608
    s_mul_i32 s48, s48, 18432
    s_mul_i32 s49, s49, 18432
    s_add_u32 s48, s48, s50
    s_add_u32 s49, s49, s50
    s_add_u32 s58, s48, 4096             ; extra (j=0)
    s_add_u32 s59, s58, 18432            ; extra (j=1)
    s_lshl_b32 s47, s45, 11
    s_add_u32 s60, s48, s47              ; j=0 main (+2p*1024)
    s_add_u32 s61, s60, 18432
    s_add_u32 s62, s49, s47
    s_add_u32 s63, s62, 18432
    s_waitcnt lgkmcnt(0)
    """)
    O = SET[0]
    n = 0
    for j in range(4):
        for ap in range(2):
            o = O + 4 * n
            n += 1
            for a2 in range(2):
                c = ACC + 4 * (4 * (2 * ap + a2) + j)
                e(f"v_cvt_pk_bf16_f32 v{o+2*a2}, v{c}, v{c+1}")
                e(f"v_cvt_pk_bf16_f32 v{o+2*a2+1}, v{c+2}, v{c+3}")
            e(f"buffer_store_dwordx4 {vr(o,4)}, v{AD+8}, s[24:27], s{60+j} offen offset:{ap*1024}")
    for j in range(2):
        o = O + 32 + 2 * j
        c = ACC + 64 + 4 * j
        e(f"v_cvt_pk_bf16_f32 v{o}, v{c}, v{c+1}")
        e(f"v_cvt_pk_bf16_f32 v{o+1}, v{c+2}, v{c+3}")
        e(f"buffer_store_dwordx2 {vr(o,2)}, v{AD+9}, s[24:27], s{58+j} offen")
    e("s_endpgm")

    e(f"{L}_loader:")
    e("s_sub_u32 s44, s28, 4                ; lw")
    if k2:
        e(f"""
        v_lshrrev_b32 v4, 3, v2
        v_and_b32 v5, 7, v2
        v_xor_b32 v5, v5, v4
        v_lshlrev_b32 v5, 4, v5
        v_lshl_add_u32 v8, v4, 12, v5
        v_add_u32 v9, {31744}, v8
        v_add_u32 v10, {31744*2}, v8
        v_add_u32 v11, {31744*3}, v8
        s_lshl_b32 s45, s29, 2
        s_add_u32 s45, s45, s44
        s_lshl_b32 s45, s45, 17              ; (128tau+32lw)*4096
        s_and_b32 s46, s30, 1
        s_lshl_b32 s46, s46, 11              ; (chi&1)*1024*2
        s_add_u32 s45, s45, s46
        s_lshl_b32 s46, s31, 7
        s_lshl_b32 s47, s30, 5
        s_add_u32 s46, s46, s47
        s_mul_i32 s46, s46, 9216
        s_mul_i32 s47, s44, 4608
        s_add_u32 s46, s46, s47
        s_lshl_b32 s48, s44, 12
        s_add_u32 s49, s47, 16384
        s_waitcnt lgkmcnt(0)
        s_cmp_lt_u32 s30, 2
        s_cselect_b32 s16, s12, s14
        s_cselect_b32 s17, s13, s15
        s_mov_b32 s18, 8388608
        s_mov_b32 s19, 0x20000
        """)
        k.srd(20, 8, SZ_ABT, WS_ABT)

        def issue(slot):
            e(f"""
            s_lshl_b32 s51, s50, 7
            s_add_u32 s51, s51, s45
            s_add_u32 m0, s48, {slot}
            s_mul_i32 s53, s50, 18432
            buffer_load_dwordx4 v8, s[16:19], s51 offen lds
            buffer_load_dwordx4 v9, s[16:19], s51 offen offset:1024 lds
            buffer_load_dwordx4 v10, s[16:19], s51 offen offset:2048 lds
            buffer_load_dwordx4 v11, s[16:19], s51 offen offset:3072 lds
            s_add_u32 s53, s53, s46
            s_add_u32 m0, s49, {slot}
            s_mov_b64 exec, s[40:41]
            buffer_load_dwordx4 v3, s[20:23], s53 offen lds
            s_mov_b64 exec, -1
            buffer_load_dwordx4 v3, s[20:23], s53 offen offset:512 lds
            buffer_load_dwordx4 v3, s[20:23], s53 offen offset:1536 lds
            buffer_load_dwordx4 v3, s[20:23], s53 offen offset:2560 lds
            buffer_load_dwordx4 v3, s[20:23], s53 offen offset:3584 lds
            """)
    else:
        for n in range(5):
            q0 = 0 if n == 0 else 32 + 64 * (n - 1)
            e(f"""
            v_add_u32 v4, {q0}, v2
            v_mul_u32_u24 v5, 3641, v4
            v_lshrrev_b32 v5, 16, v5             ; q/18
            v_mul_u32_u24 v6, {1152-288}, v5
            v_add_u32 v{8+n}, v6, v3
            """)
        e(f"""
        s_mul_i32 s45, s30, 1152
        s_lshl_b32 s46, s44, 4
        s_add_u32 s45, s45, s46
        s_mul_i32 s45, s45, 1152
        s_mul_i32 s46, s31, 288
        s_add_u32 s45, s45, s46
        s_mul_i32 s46, s29, 144
        s_mul_i32 s47, s30, 36
        s_add_u32 s46, s46, s47
        s_lshl_b32 s46, s46, 13
        s_lshl_b32 s47, s44, 12
        s_add_u32 s46, s46, s47
        s_mul_i32 s48, s44, 4608
        s_add_u32 s49, s47, 18432
        s_waitcnt lgkmcnt(0)
        """)
        k.srd(16, 12, 5308416)
        k.srd(20, 8, SZ_HH, WS_HH)

        def issue(slot):
            e(f"""
            s_lshl_b32 s53, s50, 14
            s_add_u32 s53, s53, s46
            s_add_u32 m0, s49, {slot}
            s_mul_i32 s51, s50, 73728
            buffer_load_dwordx4 v3, s[20:23], s53 offen lds
            buffer_load_dwordx4 v3, s[20:23], s53 offen offset:1024 lds
            buffer_load_dwordx4 v3, s[20:23], s53 offen offset:2048 lds
            buffer_load_dwordx4 v3, s[20:23], s53 offen offset:3072 lds
            s_add_u32 s51, s51, s45
            s_add_u32 m0, s48, {slot}
            s_mov_b64 exec, s[40:41]
            buffer_load_dwordx4 v8, s[16:19], s51 offen lds
            s_mov_b64 exec, -1
            buffer_load_dwordx4 v9, s[16:19], s51 offen offset:512 lds
            buffer_load_dwordx4 v10, s[16:19], s51 offen offset:1536 lds
            buffer_load_dwordx4 v11, s[16:19], s51 offen offset:2560 lds
            buffer_load_dwordx4 v12, s[16:19], s51 offen offset:3584 lds
            """)
    e(f"""
    s_mov_b32 s40, -1
    s_mov_b32 s41, 0
    s_mul_i32 s50, s31, {NG // 4 if rot_period else 0}
    """)

    def nxt():
        e(f"s_add_u32 s50, s50, 1\ns_cmp_eq_u32 s50, {NG}\ns_cselect_b32 s50, 0, s50")
    for g in range(4):
        issue(str(g * SLOT))
        nxt()
    e(f"""
    s_mov_b32 s54, 0
    s_mov_b32 s52, {NG-4}
    s_waitcnt vmcnt(27)
    s_barrier
    {L}_lloop:
    s_waitcnt vmcnt(18)
    s_barrier
    """)
    issue("s54")
    nxt()
    e(f"""
    s_add_u32 s54, s54, {SLOT}
    s_cmp_eq_u32 s54, {4*SLOT}
    s_cselect_b32 s54, 0, s54
    s_sub_u32 s52, s52, 1
    s_cmp_lg_u32 s52, 0
    s_cbranch_scc1 {L}_lloop
    s_waitcnt vmcnt(18)
    s_barrier
    s_waitcnt vmcnt(9)
    s_barrier
    s_waitcnt vmcnt(0)
    s_barrier
    s_barrier
    {L}_end:
    s_endpgm
    """)
    return k
```

```python
from asmlib import *

GSLOT = 36864


def gen_k3(stagger=True):
    k = K("k3", 256, 512, 4 * GSLOT, 256)
    e = k.e
    HN = 0
    ACC = 144
    WF = 192
    U = 216
    VD = 232
    VDL = 237
    VT = 242
    VS = 243
    TMP = 244
    e(f"""
    s_cmp_ge_u32 s2, 256
    s_cbranch_scc1 L_k3_end
    s_load_dwordx4 s[12:15], s[0:1], {KA_WG}
    s_load_dwordx2 s[8:9], s[0:1], {KA_WS}
    v_lshrrev_b32 v1, 6, v0
    v_and_b32 v2, 63, v0                 ; lane
    v_readfirstlane_b32 s28, v1
    s_and_b32 s3, s2, 7                  ; xcd
    s_lshr_b32 s33, s2, 3                ; idx
    s_and_b32 s29, s3, 1
    s_lshl_b32 s29, s29, 2
    s_and_b32 s34, s33, 3
    s_add_u32 s29, s29, s34
    s_lshr_b32 s30, s3, 1
    s_lshl_b32 s30, s30, 3
    s_lshr_b32 s34, s33, 2
    s_add_u32 s30, s30, s34              ; j (F tile 0..31)
    s_and_b32 s31, s30, 1                ; odd
    v_lshlrev_b32 v{VS}, 4, v2
    v_lshrrev_b32 v3, 2, v2
    v_mul_u32_u24 v3, 96, v3
    v_and_b32 v4, 3, v2
    v_lshl_add_u32 v{VT}, v4, 3, v3      ; (l>>2)*96 + (l&3)*8
    s_mul_i32 s35, s31, 288
    """)
    for n in range(5):
        q0 = 0 if n == 0 else 32 + 64 * (n - 1)
        e(f"""
        v_add_u32 v3, {q0}, v2
        v_mul_u32_u24 v4, 10923, v3
        v_lshrrev_b32 v4, 16, v4             ; q/6
        v_mul_u32_u24 v5, 6, v4
        v_sub_u32 v5, v3, v5                 ; col
        v_mul_u32_u24 v4, 9120, v4
        v_add_u32 v{VD+n}, v4, v{VS}
        v_lshrrev_b32 v5, 2, v5              ; col>=4
        v_xor_b32 v5, 1, v5                  ; col<4
        v_mul_u32_u24 v{VDL+n}, s35, v5
        """)
    e(f"""
    s_and_b32 s36, s28, 3
    s_mul_i32 s37, s36, {48*9216}
    s_mul_i32 s38, s30, 9
    s_add_u32 s38, s38, s31
    s_lshl_b32 s39, s38, 5
    s_add_u32 s37, s37, s39
    s_lshr_b32 s39, s28, 2               ; mat
    s_mul_i32 s40, s39, 18432
    s_mul_i32 s41, s36, 4608
    s_add_u32 s40, s40, s41              ; m0 part
    s_mov_b32 s42, -1
    s_mov_b32 s43, 0
    s_lshl_b32 s44, s29, 3
    s_add_u32 s44, s44, s28
    s_mul_i32 s44, s44, 36864
    s_waitcnt lgkmcnt(0)
    s_cmp_eq_u32 s39, 0
    s_cselect_b32 s16, s12, s14
    s_cselect_b32 s17, s13, s15
    s_mov_b32 s18, 5308416
    s_mov_b32 s19, 0x20000
    """)
    k.srd(20, 8, SZ_H, WS_HN)
    k.srd(24, 8, SZ_HH, WS_HH)

    def dma(slot, soff):
        return [
            f"s_add_u32 m0, s40, {slot}",
            "s_mov_b64 exec, s[42:43]",
            f"buffer_load_dwordx4 v{VD}, s[16:19], {soff} offen lds",
            "s_mov_b64 exec, -1",
            f"buffer_load_dwordx4 v{VD+1}, s[16:19], {soff} offen offset:512 lds",
            f"buffer_load_dwordx4 v{VD+2}, s[16:19], {soff} offen offset:1536 lds",
            f"buffer_load_dwordx4 v{VD+3}, s[16:19], {soff} offen offset:2560 lds",
            f"buffer_load_dwordx4 v{VD+4}, s[16:19], {soff} offen offset:3584 lds",
        ]
    GR = 192 * 9216
    for g in range(3):
        e(f"s_add_u32 s45, s37, {g*GR}")
        for ln in dma(str(g * GSLOT), "s45"):
            e(ln)
        for kap in range(6 * g, 6 * g + 6):
            for t in range(2):
                off = (t * 18 + kap) * 1024
                e(f"s_add_u32 s46, s44, {off & ~4095}")
                e(f"buffer_load_dwordx4 {vr(HN+8*kap+4*t,4)}, v{VS}, s[20:23], s46 offen offset:{off & 4095}")
    e(f"""
    s_add_u32 s37, s37, 96
    s_mov_b32 s48, {3*GSLOT}
    s_lshl_b32 s50, s29, 1
    s_add_u32 s50, s50, s39
    s_mul_i32 s50, s50, 144
    s_lshr_b32 s51, s38, 1               ; phi0
    s_add_u32 s50, s50, s51
    s_lshl_b32 s50, s50, 13
    s_lshl_b32 s51, s36, 11
    s_add_u32 s50, s50, s51
    s_mul_i32 s51, s31, {(-5*8192+8) & 0xffffffff:#x}
    s_add_u32 s51, s51, s50
    s_add_u32 s51, s51, {4*8192}
    s_mov_b32 s52, 0                     ; pass
    s_mov_b32 s53, 0
    s_mov_b32 s56, {GSLOT}
    s_mov_b32 s57, {(-3*GSLOT) & 0xffffffff:#x}
    s_mov_b32 s58, 0xbfb8aa3b            ; -log2(e)
    """)
    if stagger:
        e("s_cmp_lt_u32 s28, 4\ns_cbranch_scc0 L_k3_noprio\ns_setprio 1\nL_k3_noprio:")

    def rd(n):
        ks, idx = divmod(n, 6)
        f, m = divmod(idx, 2)
        off = m * 18432 + ks * 3072 + f * 32
        d = WF + 4 * idx
        return [f"ds_read_b64_tr_b16 {vr(d,2)}, v{VT} offset:{off}",
                f"ds_read_b64_tr_b16 {vr(d+2,2)}, v{VT} offset:{off+1536}"]

    adv = ["s_add_u32 s53, s53, 1", "s_and_b32 s53, s53, 3", "s_cselect_b32 s54, s56, s57", f"v_add_u32 v{VT}, s54, v{VT}"]

    def next_dma(gl, skip_pass):
        lab = k.lab("nodma")
        out = [f"s_cmp_eq_u32 s52, {skip_pass}", f"s_cbranch_scc1 {lab}", f"s_add_u32 s45, s37, {gl*GR}"]
        out += dma("s48", "s45")
        out += [f"s_add_u32 s48, s48, {GSLOT}", f"s_cmp_eq_u32 s48, {4*GSLOT}", "s_cselect_b32 s48, 0, s48"]
        return out, lab

    e("s_waitcnt vmcnt(46)\ns_barrier")
    e("L_k3_pass:")
    for n in range(6):
        for ln in rd(n):
            e(ln)
    lines, lab = next_dma(2, 0)
    for ln in lines:
        e(ln)
    e("s_add_u32 s37, s37, 96\ns_sub_u32 s37, s37, s35")
    for n in range(5):
        e(f"v_add_u32 v{VD+n}, v{VD+n}, v{VDL+n}")
    e(f"{lab}:")
    for gl in range(3):
        for n in range(36):
            ks, idx = divmod(n, 6)
            f, m = divmod(idx, 2)
            kap = 6 * gl + ks
            last_step = (gl == 2 and ks == 5)
            if idx == 0:
                issued = 51 + 5 * gl
                done = 5 * (gl + 1) + 12 * gl + 2 * (ks + 1)
                e(f"s_waitcnt vmcnt({issued - done})")
            if n == 30:
                lab = k.lab("w")
                if gl == 0:
                    e(f"s_waitcnt vmcnt(29)\ns_cmp_eq_u32 s52, 0\ns_cbranch_scc1 {lab}\ns_waitcnt vmcnt(7)\n{lab}:\ns_barrier")
                elif gl == 1:
                    e(f"s_waitcnt vmcnt(17)\ns_cmp_eq_u32 s52, 0\ns_cbranch_scc1 {lab}\ns_waitcnt vmcnt(5)")
                    e(f"s_cmp_eq_u32 s52, 1\ns_cbranch_scc1 {lab}\ns_waitcnt vmcnt(0)\n{lab}:\ns_barrier")
                else:
                    e("s_waitcnt vmcnt(5)")
                    e(f"s_cmp_eq_u32 s52, 2\ns_cbranch_scc1 {lab}")
                    if stagger:
                        e(f"s_cmp_lt_u32 s28, 4\ns_cbranch_scc1 {lab}")
                    e(f"s_barrier\n{lab}:")
                for ln in adv:
                    e(ln)
            cnt = 10 if not last_step else 2 * (5 - idx)
            e(f"s_waitcnt lgkmcnt({cnt})")
            for t in range(2):
                d = ACC + 16 * f + 8 * m + 4 * t
                k.mfma(d, WF + 4 * idx, HN + 8 * kap + 4 * t, "0" if kap == 0 else None)
            if not last_step:
                for ln in rd((n + 6) % 36):
                    e(ln)
            if n == 31 and gl < 2:
                lines, lab = next_dma(gl, 2)
                for ln in lines:
                    e(ln)
                e(f"{lab}:")
    e("s_nop 7")
    for f in range(3):
        for t in range(2):
            g = ACC + 16 * f + 4 * t
            u = g + 8
            tb = TMP + 4 * ((2 * f + t) % 3)
            for r in range(4):
                e(f"v_mul_f32 v{tb+r}, s58, v{g+r}")
            for r in range(4):
                e(f"v_exp_f32 v{tb+r}, v{tb+r}")
            for r in range(4):
                e(f"v_add_f32 v{tb+r}, 1.0, v{tb+r}")
            for r in range(4):
                e(f"v_rcp_f32 v{tb+r}, v{tb+r}")
            for r in range(4):
                e(f"v_mul_f32 v{tb+r}, v{tb+r}, v{u+r}")
            o = U + 8 * t + 2 + 2 * f
            e(f"v_cvt_pk_bf16_f32 v{o}, v{tb}, v{tb+1}")
            e(f"v_cvt_pk_bf16_f32 v{o+1}, v{tb+2}, v{tb+3}")
    e(f"""
    s_cmp_eq_u32 s52, 1
    s_cbranch_scc1 L_k3_st1
    buffer_store_dwordx4 {vr(U+2,4)}, v{VS}, s[24:27], s50 offen
    buffer_store_dwordx4 {vr(U+10,4)}, v{VS}, s[24:27], s50 offen offset:1024
    s_cmp_eq_u32 s52, 2
    s_cbranch_scc1 L_k3_last
    v_mov_b32 v{U}, v{U+6}
    v_mov_b32 v{U+1}, v{U+7}
    v_mov_b32 v{U+8}, v{U+14}
    v_mov_b32 v{U+9}, v{U+15}
    s_add_u32 s50, s50, 8192
    """)
    e(f"""
    s_branch L_k3_next
    L_k3_st1:
    buffer_store_dwordx4 {vr(U,4)}, v{VS}, s[24:27], s50 offen
    buffer_store_dwordx4 {vr(U+8,4)}, v{VS}, s[24:27], s50 offen offset:1024
    s_add_u32 s50, s50, 8192
    buffer_store_dwordx4 {vr(U+4,4)}, v{VS}, s[24:27], s50 offen
    buffer_store_dwordx4 {vr(U+12,4)}, v{VS}, s[24:27], s50 offen offset:1024
    s_add_u32 s50, s50, 8192
    L_k3_next:
    s_add_u32 s52, s52, 1
    """)
    if stagger:
        e("s_cmp_lt_u32 s28, 4\ns_cbranch_scc0 L_k3_pass\ns_barrier")
    e(f"""
    s_branch L_k3_pass
    L_k3_last:
    buffer_store_dwordx2 {vr(U+6,2)}, v{VS}, s[24:27], s51 offen
    buffer_store_dwordx2 {vr(U+14,2)}, v{VS}, s[24:27], s51 offen offset:1024
    L_k3_end:
    s_endpgm
    """)
    return k
```

```python
from asmlib import *
from k1 import bf16_round


def xlane_sum(k, v, t):
    for op in ("v_permlane16_swap_b32", "v_permlane32_swap_b32"):
        k.e(f"""
        v_mov_b32 v{t}, v{v}
        s_nop 1
        {op} v{v}, v{t}
        s_nop 1
        v_add_f32 v{v}, v{v}, v{t}
        """)


def gen_red(which):
    ln = which == "k2b"
    k = K(which, 128, 256, 1024 if ln else 0, 136)
    e = k.e
    L = f"L_{which}"
    e(f"""
    s_cmp_ge_u32 s2, 128
    s_cbranch_scc1 {L}_end
    s_load_dwordx2 s[4:5], s[0:1], {KA_X if ln else KA_OUT}
    s_load_dwordx2 s[8:9], s[0:1], {KA_WS}
    v_lshrrev_b32 v1, 6, v0
    v_and_b32 v2, 63, v0                 ; lane
    v_readfirstlane_b32 s28, v1
    v_lshlrev_b32 v3, 4, v2              ; lane*16
    v_lshlrev_b32 v4, 3, v2              ; lane*8
    v_and_b32 v5, 15, v2                 ; i
    v_lshrrev_b32 v6, 4, v2              ; g
    v_mul_u32_u24 v7, 1152, v5
    v_lshl_add_u32 v7, v6, 3, v7
    s_mul_i32 s30, s2, 18432             ; T*18432 (also T*16*1152)
    s_mul_i32 s31, s28, 4608
    s_add_u32 s31, s31, s30
    s_mul_i32 s32, s28, 288
    s_add_u32 s32, s32, s30
    s_mul_i32 s33, s28, 9
    s_lshr_b32 s34, s33, 1
    s_lshl_b32 s34, s34, 10
    s_and_b32 s35, s33, 1
    s_lshl_b32 s35, s35, 3
    s_add_u32 s34, s34, s35
    s_add_u32 s34, s34, s30              ; even a
    s_add_u32 s33, s33, 1
    s_lshr_b32 s36, s33, 1
    s_lshl_b32 s36, s36, 10
    s_and_b32 s35, s33, 1
    s_lshl_b32 s35, s35, 3
    s_add_u32 s36, s36, s35
    s_add_u32 s36, s36, s30              ; odd a
    s_add_u32 s37, s34, 4096             ; a = 8
    s_waitcnt lgkmcnt(0)
    """)
    k.srd(16, 4, 2359296)
    k.srd(20, 8, SZ_P, WS_P2 if ln else WS_P4)
    k.srd(24, 8, SZ_H, WS_H)
    if ln:
        k.srd(12, 8, SZ_H, WS_HN)
    P0 = 8
    X0 = 80
    F0 = 98

    def unit_addr(a):
        if a == 8:
            return "s37", 0
        return ("s34" if a % 2 == 0 else "s36"), (a // 2) * 1024
    for c in range(4):
        if c:
            e(f"s_add_u32 s31, s31, {128*18432}")
        e(f"s_add_u32 s38, s31, 4096")
        for b in range(4):
            e(f"buffer_load_dwordx4 {vr(P0+18*c+4*b,4)}, v3, s[20:23], s31 offen offset:{b*1024}")
        e(f"buffer_load_dwordx2 {vr(P0+18*c+16,2)}, v4, s[20:23], s38 offen")
    for a in range(9):
        if ln:
            e(f"buffer_load_dwordx2 {vr(X0+2*a,2)}, v7, s[16:19], s32 offen offset:{a*32}")
        else:
            s, off = unit_addr(a)
            e(f"buffer_load_dwordx2 {vr(X0+2*a,2)}, v3, s[24:27], {s} offen offset:{off}")
    T = 134
    srcs = [P0 + 18 * c for c in range(4)] + [X0]
    for n, sb in enumerate(srcs):
        e(f"s_waitcnt vmcnt({[24, 19, 14, 9, 0][n]})")
        for j in range(18):
            if n == 0:
                e(f"v_lshlrev_b32 v{F0+2*j}, 16, v{sb+j}")
                e(f"v_and_b32 v{F0+2*j+1}, 0xffff0000, v{sb+j}")
            else:
                e(f"v_lshlrev_b32 v{T}, 16, v{sb+j}")
                e(f"v_and_b32 v{T+1}, 0xffff0000, v{sb+j}")
                e(f"v_pk_add_f32 {vr(F0+2*j,2)}, {vr(F0+2*j,2)}, {vr(T,2)}")
    H0 = 8
    for j in range(18):
        e(f"v_cvt_pk_bf16_f32 v{H0+j}, v{F0+2*j}, v{F0+2*j+1}")
    if not ln:
        for a in range(9):
            e(f"buffer_store_dwordx2 {vr(H0+2*a,2)}, v7, s[16:19], s32 offen offset:{a*32}")
        e(f"{L}_end:\ns_endpgm")
        return k
    for a in range(9):
        s, off = unit_addr(a)
        e(f"buffer_store_dwordx2 {vr(H0+2*a,2)}, v3, s[24:27], {s} offen offset:{off}")
    for j in range(18):
        e(f"v_lshlrev_b32 v{F0+2*j}, 16, v{H0+j}")
        e(f"v_and_b32 v{F0+2*j+1}, 0xffff0000, v{H0+j}")
    S = 28
    e(f"v_pk_add_f32 {vr(S,2)}, {vr(F0,2)}, {vr(F0+2,2)}")
    e(f"v_pk_add_f32 {vr(S+2,2)}, {vr(F0+4,2)}, {vr(F0+6,2)}")
    for j in range(4, 18):
        a = j % 2
        e(f"v_pk_add_f32 {vr(S+2*a,2)}, {vr(S+2*a,2)}, {vr(F0+2*j,2)}")
    e(f"v_pk_add_f32 {vr(S,2)}, {vr(S,2)}, {vr(S+2,2)}")
    e(f"v_add_f32 v{S}, v{S}, v{S+1}")
    xlane_sum(k, S, S + 1)
    MU = S + 4
    e(f"""
    v_mul_f32 v{MU}, 0x3be38e39, v{S}    ; 1/144
    v_sub_f32 v{S+6}, 0, v{MU}
    v_mov_b32 v{S+7}, v{S+6}
    """)
    D0 = 48
    for j in range(18):
        e(f"v_pk_add_f32 {vr(D0+2*j,2)}, {vr(F0+2*j,2)}, {vr(S+6,2)}")
    e(f"v_pk_mul_f32 {vr(S,2)}, {vr(D0,2)}, {vr(D0,2)}")
    e(f"v_pk_mul_f32 {vr(S+2,2)}, {vr(D0+2,2)}, {vr(D0+2,2)}")
    for j in range(2, 18):
        a = j % 2
        e(f"v_pk_fma_f32 {vr(S+2*a,2)}, {vr(D0+2*j,2)}, {vr(D0+2*j,2)}, {vr(S+2*a,2)}")
    e(f"v_pk_add_f32 {vr(S,2)}, {vr(S,2)}, {vr(S+2,2)}")
    e(f"v_add_f32 v{MU+1}, v{S}, v{S+1}")
    xlane_sum(k, MU + 1, S + 1)
    Q = S + 8
    e(f"""
    v_lshlrev_b32 v{S}, 5, v5            ; i*32
    s_lshl_b32 s38, s28, 3
    v_add_u32 v{S+1}, s38, v{S}
    ds_write_b64 v{S+1}, {vr(MU,2)}
    s_waitcnt lgkmcnt(0)
    s_barrier
    ds_read_b128 {vr(Q,4)}, v{S}
    ds_read_b128 {vr(Q+4,4)}, v{S} offset:16
    s_waitcnt lgkmcnt(0)
    v_add_f32 v{S}, v{Q}, v{Q+2}
    v_add_f32 v{S+1}, v{Q+4}, v{Q+6}
    v_add_f32 v{S}, v{S}, v{S+1}
    v_mul_f32 v{S}, 0.25, v{S}           ; mean
    v_add_f32 v{S+1}, v{Q+1}, v{Q+3}
    v_add_f32 v{S+2}, v{Q+5}, v{Q+7}
    v_add_f32 v{S+1}, v{S+1}, v{S+2}     ; sum M2
    v_sub_f32 v{Q}, v{Q}, v{S}
    v_sub_f32 v{Q+2}, v{Q+2}, v{S}
    v_sub_f32 v{Q+4}, v{Q+4}, v{S}
    v_sub_f32 v{Q+6}, v{Q+6}, v{S}
    v_mul_f32 v{S+2}, v{Q}, v{Q}
    v_fmac_f32 v{S+2}, v{Q+2}, v{Q+2}
    v_fmac_f32 v{S+2}, v{Q+4}, v{Q+4}
    v_fmac_f32 v{S+2}, v{Q+6}, v{Q+6}
    v_mul_f32 v{S+1}, 0x3ae38e39, v{S+1} ; /576
    v_fmac_f32 v{S+1}, 0.25, v{S+2}
    """)
    bf16_round(k, S, S)
    bf16_round(k, S + 1, S + 1)
    e(f"v_add_f32 v{S+1}, 0x3727c5ac, v{S+1}")
    bf16_round(k, S + 1, S + 1)
    e(f"v_sqrt_f32 v{S+1}, v{S+1}\ns_nop 0")
    bf16_round(k, S + 1, S + 1)
    e(f"""
    v_rcp_f32 v{S+4}, v{S+1}
    v_sub_f32 v{S+2}, 0, v{S}
    v_mov_b32 v{S+3}, v{S+2}
    v_mov_b32 v{S+5}, v{S+4}
    """)
    for a in range(9):
        for j in (2 * a, 2 * a + 1):
            e(f"v_pk_add_f32 {vr(F0+2*j,2)}, {vr(F0+2*j,2)}, {vr(S+2,2)}")
            e(f"v_pk_mul_f32 {vr(F0+2*j,2)}, {vr(F0+2*j,2)}, {vr(S+4,2)}")
            e(f"v_cvt_pk_bf16_f32 v{D0+j}, v{F0+2*j}, v{F0+2*j+1}")
        s, off = unit_addr(a)
        e(f"buffer_store_dwordx2 {vr(D0+2*a,2)}, v3, s[12:15], {s} offen offset:{off}")
    e(f"{L}_end:\ns_endpgm")
    return k
```

```python
import sys
from asmlib import *
from k1 import gen_k1
from k24 import gen_gemm
from kred import gen_red
from k3 import gen_k3

def build(**kw):
    ks = [gen_k1(), gen_gemm("k2"), gen_red("k2b"), gen_k3(kw.get("stagger", True)), gen_gemm("k4"), gen_red("k4b")]
    return assemble_file(ks)

if __name__ == "__main__":
    out = sys.argv[1] if len(sys.argv) > 1 else f"cdna_kernels/{NAME}.s"
    open(out, "w").write(build())
```
